```python
import torch

def _softmax(x, axis=-1):
    return torch.softmax(x, dim=axis)
def _gelu(x):
    return torch.nn.functional.gelu(x, approximate="tanh")
def _silu(x):
    return torch.nn.functional.silu(x)
def _sigmoid(x):
    return torch.sigmoid(x)
def _layernorm(x, axis=-1, eps=1e-5):
    m = x.mean(dim=axis, keepdim=True)
    v = x.var(dim=axis, keepdim=True, unbiased=False)
    return (x - m) / torch.sqrt(v + eps)
def _scatter_add(tgt, idx, src, axis=0):
    return tgt.clone().index_add_(axis, idx, src)
def _segment_sum(src, seg, n):
    out = torch.zeros((n,) + src.shape[1:], dtype=src.dtype)
    return out.index_add_(0, seg, src)
def _pad(x, pw):
    flat = tuple(v for pair in reversed(pw) for v in pair)
    return torch.nn.functional.pad(x, flat)

kernel_name = 'parallel_sum__sliding_block_cached__mixer_channel_mlp__decode'

def setup_inputs():

    _w = (lambda a: (lambda t: t.to(torch.bfloat16) if t.is_floating_point() else t)(torch.as_tensor(a)))
    def _A_setup():
        B, Sq, D = 1, 1, 512
        Hq, Hkv, Sk, Dh = 32, 32, 16384, 128
        assert Hq % Hkv == 0, (Hq, Hkv)
        return {
            "x": _w((lambda *s: torch.randn(*s, dtype=torch.bfloat16) * 0.05)(B, Sq, D)),
            "k_cache": _w((lambda *s: torch.randn(*s, dtype=torch.bfloat16) * 3.2)(B, Hkv, Sk, Dh)),
            "v_cache": _w((lambda *s: torch.randn(*s, dtype=torch.bfloat16) * 0.4)(B, Hkv, Sk, Dh)),
            "wq": _w((lambda *s: torch.randn(*s, dtype=torch.bfloat16) * 3.2)(D, Hq * Dh) * (D ** -0.5)),
            "wo": _w((lambda *s: torch.randn(*s, dtype=torch.bfloat16) * 0.4)(Hq * Dh, D) * ((Hq * Dh) ** -0.5)),
        }
    _A_in = _A_setup()

    def _B_setup():
        B, S, D, F = 1, 1, 512, 1376
        return {
            "x": _w((lambda *s: torch.randn(*s, dtype=torch.bfloat16) * 0.05)(B, S, D)),
            "w1": _w((lambda *s: torch.randn(*s, dtype=torch.bfloat16) * 1.6)(D, F) * (D ** -0.5)),
            "b1": _w((lambda *s: torch.randn(*s, dtype=torch.bfloat16) * 1.6)(F)),
            "w2": _w((lambda *s: torch.randn(*s, dtype=torch.bfloat16) * 0.1)(F, D) * (F ** -0.5)),
            "b2": _w((lambda *s: torch.randn(*s, dtype=torch.bfloat16) * 0.1)(D)),
        }
    _B_in = _B_setup()

    return {
        "A_x": _A_in["x"],
        "A_k_cache": _A_in["k_cache"],
        "A_v_cache": _A_in["v_cache"],
        "A_wq": _A_in["wq"],
        "A_wo": _A_in["wo"],
        "B_x": _B_in["x"],
        "B_w1": _B_in["w1"],
        "B_b1": _B_in["b1"],
        "B_w2": _B_in["w2"],
        "B_b2": _B_in["b2"],
    }

def reference(A_x, A_k_cache, A_v_cache, A_wq, A_wo, B_x, B_w1, B_b1, B_w2, B_b2):
    def _A_ref(x, k_cache, v_cache, wq, wo):
        B, Sq, D = x.shape
        Hq, Dh = 32, 128
        Hkv, Sk = k_cache.shape[1], k_cache.shape[2]
        W = min(4096, max(256, Sk // 4))
        rep = Hq // Hkv
        q = (lambda x, *d: x.permute(*d))((x @ wq).reshape(B, Sq, Hq, Dh), 0, 2, 1, 3)
        k = (lambda x, n, axis: torch.repeat_interleave(x, n, dim=axis))(k_cache[:, :, Sk - W:, :], rep, axis=1)
        v = (lambda x, n, axis: torch.repeat_interleave(x, n, dim=axis))(v_cache[:, :, Sk - W:, :], rep, axis=1)
        scores = torch.einsum("bhqd,bhkd->bhqk", q, k) * (Dh ** -0.5)
        p = _softmax(scores, axis=-1)
        o = torch.einsum("bhqk,bhkd->bhqd", p, v)
        return (lambda x, *d: x.permute(*d))(o, 0, 2, 1, 3).reshape(B, Sq, Hq * Dh) @ wo

    def _B_ref(x, w1, b1, w2, b2):
        y = _layernorm(x, axis=-1)
        h = _gelu(torch.einsum("bsd,df->bsf", y, w1) + b1)
        return torch.einsum("bsf,fd->bsd", h, w2) + b2

    x = A_x
    xn = _layernorm(x, axis=-1)
    return x + _A_ref(xn, A_k_cache, A_v_cache, A_wq, A_wo) + _B_ref(xn, B_w1, B_b1, B_w2, B_b2)
```

```python
import re
TRANS = ("v_exp_f32", "v_log_f32", "v_rcp_f32", "v_rsq_f32", "v_sqrt_f32", "v_sin_f32", "v_cos_f32", "v_rcp_iflag_f32")
def regs_of(tok):
    tok = tok.strip()
    neg = tok.lstrip("-|").rstrip("|")
    if neg.startswith("abs("): neg = neg[4:-1]
    m = re.fullmatch(r"([vsa])(\d+)", neg)
    if m: return {(m.group(1), int(m.group(2)))}
    m = re.fullmatch(r"([vsa])\[(\d+):(\d+)\]", neg)
    if m: return {(m.group(1), k) for k in range(int(m.group(2)), int(m.group(3)) + 1)}
    if neg == "vcc": return {("s", 106), ("s", 107)}
    if neg == "vcc_lo": return {("s", 106)}
    if neg == "vcc_hi": return {("s", 107)}
    if neg == "exec": return {("s", 126), ("s", 127)}
    return set()
class Ins:
    def __init__(self, text):
        self.text = text
        t = text.split(";")[0].strip()
        self.label = t.endswith(":")
        self.op = t.split()[0] if t else ""
        rest = t[len(self.op):].strip()
        ops = [o.strip() for o in rest.split(",")] if rest else []
        if ops:
            ops[-1] = ops[-1].split()[0] if ops[-1].split() else ops[-1]
        self.ops = ops
        op = self.op
        self.valu = op.startswith("v_") and not op.startswith("v_mfma")
        self.mfma = op.startswith("v_mfma")
        self.dpp = "_dpp" in op or "row_" in t or "quad_perm" in t
        self.trans = any(op.startswith(x) for x in TRANS)
        self.perml = op.startswith("v_permlane")
        self.rdlane = op.startswith("v_readlane") or op.startswith("v_readfirstlane")
        self.vmem = op.startswith("buffer_") or op.startswith("global_")
        self.ds = op.startswith("ds_")
        self.w = set(); self.r = set()
        R = [regs_of(o) for o in ops]
        if self.mfma:
            self.w = R[0]; self.A = R[1]; self.B = R[2]; self.C = R[3]; self.r = R[1] | R[2] | R[3]
        elif self.valu:
            if self.perml:
                self.w = R[0] | R[1]; self.r = R[0] | R[1]
            elif op.startswith("v_cmp"):
                self.w = R[0]; self.r = set().union(*R[1:])
            elif op.startswith(("v_add_co", "v_sub_co", "v_addc_co", "v_div_scale")):
                self.w = R[0] | R[1]; self.r = set().union(*R[2:])
            else:
                self.w = R[0]; self.r = set().union(*R[1:]) if len(R) > 1 else set()
                if op.startswith(("v_fmac", "v_dot2c", "v_mac", "v_pk_fmac")) or self.dpp or "d16" in op or op.startswith("v_writelane"):
                    self.r |= R[0]
                if op.startswith("v_cndmask") and len(ops) == 3: self.r |= regs_of("vcc")
                if op.startswith("v_div_fmas"): self.r |= regs_of("vcc")
        elif self.vmem or self.ds:
            isload = ("load" in op or "read" in op or "bpermute" in op or "permute" in op or "swizzle" in op) and " lds" not in t
            isret = "atomic" in op and " sc0" in t
            if isload:
                self.w = R[0]; self.r = set().union(*R[1:])
            else:
                self.r = set().union(*R)
                if isret: self.w = R[0]
            self.wide_store = self.vmem and ("store_dwordx4" in op or "store_dwordx3" in op)
            if self.wide_store:
                self.sdata = R[0] if op.startswith("buffer_") else R[1]
        elif op.startswith("s_"):
            pass
        self.states = 1
        if op == "s_nop": self.states = int(ops[0], 0) + 1
        if self.label or not op or op.startswith("."): self.states = 0
def need(p, c):
    n = 0
    pv = {x for x in p.w if x[0] in "va"}; ps = {x for x in p.w if x[0] == "s"}
    if p.valu:
        if c.valu and c.dpp and (pv & c.r): n = max(n, 2)
        if c.rdlane and (pv & c.r): n = max(n, 1)
        if c.perml and (pv & c.r): n = max(n, 2)
        if p.trans and c.valu and not c.trans and (pv & c.r): n = max(n, 1)
        if p.trans and (c.mfma or c.ds or c.vmem) and (pv & c.r): n = max(n, 1)
        if ps:
            if c.valu and (ps & c.r): n = max(n, 4 if c.rdlane else 2)
            if c.vmem and (ps & c.r): n = max(n, 5)
            if c.op.startswith("s_") and any(ps & regs_of(o) for o in c.ops): n = max(n, 2)
            if c.op.startswith("s_cbranch_vcc") and (("s", 106) in ps): n = max(n, 2)
        if c.mfma and (pv & c.r): n = max(n, 2)
    if p.mfma:
        if c.mfma:
            if p.w & (c.A | c.B): n = max(n, 8)
            if (p.w & c.C) and p.w != c.C: n = max(n, 6)
            if (p.w & c.w) and p.w != c.C: n = max(n, 6)
        elif c.valu:
            if p.w & (c.r | c.w): n = max(n, 8)
            if p.C & c.w: n = max(n, 3)
        elif c.vmem or c.ds:
            if p.w & (c.r | c.w): n = max(n, 8)
    if getattr(p, "wide_store", False) and (c.valu or c.mfma) and (p.sdata & c.w): n = max(n, 2)
    if getattr(p, "wide_store", False) and (c.vmem or c.ds) and (p.sdata & c.w): n = max(n, 1)
    return n
def pad(lines):
    out = []; hist = []
    for ln in lines:
        c = Ins(ln)
        if c.states:
            dist = 0; req = 0
            for p in reversed(hist):
                k = need(p, c) - dist
                req = max(req, k)
                dist += p.states
                if dist > 12: break
            while req > 0:
                k = min(req, 16)
                nop = f"s_nop {k-1}"
                out.append("    " + nop); hist.append(Ins(nop)); req -= k
            hist.append(c)
        out.append(ln if (c.label or ln.startswith((";", "."))) else "    " + ln.strip())
    return out
```

```python
import sys
sys.path.insert(0, "tools")
from asmlib import pad
NAME = "parallel_sum__sliding_block_cached__mixer_channel_mlp__decode"
HDR = open("cdna_kernels/" + NAME + ".s.ref").read().split("; Override launch geometry")[0]

OFF_Q, OFF_Z, OFF_ML, OFF_O, OFF_YA, OFF_YB = 0, 512, 768, 1024, 1536, 1792
L_CLR = 12
L_QF, L_ISS, L_MLC, L_ML, L_Q, L_H, L_XN, L_Y, L_OP, L_WO, RS = 0, 4, 8, 64, 128, 384, 512, 1536, 4096, 8192, 144
LDS_BYTES = L_WO + 128 * RS
W1_BYTES = 512 * 1376 * 2
STAMP_OFF = 0x1000000

def gen(stamps=False, rot="w1*8+b3", kflags=" nt", wflags=" nt"):
    L = []
    A = L.append
    uid = [0]
    def lab(p):
        uid[0] += 1
        return f"L_{p}_{uid[0]}"
    def stamp(k):
        if stamps: A(f"s_memrealtime s[{64+2*k}:{65+2*k}]")
    def stamp_init():
        if stamps:
            for k in range(1, 8): A(f"s_mov_b64 s[{64+2*k}:{65+2*k}], 0")
    def wave_end():
        if stamps: A("s_branch L_stamps")
        else: A("s_endpgm")
    def allred(op, a, t, rows=(8, 4, 2, 1), x16=True, x32=True):
        for r in rows:
            A(f"{op}_dpp v{a}, v{a}, v{a} row_ror:{r} row_mask:0xf bank_mask:0xf")
        if x16:
            A(f"v_mov_b32 v{t}, v{a}"); A(f"v_permlane16_swap_b32 v{a}, v{t}"); A(f"{op} v{a}, v{a}, v{t}")
        if x32:
            A(f"v_mov_b32 v{t}, v{a}"); A(f"v_permlane32_swap_b32 v{a}, v{t}"); A(f"{op} v{a}, v{a}, v{t}")
    def lds_spin(off, val, vz, vt, st, cnt, sleep=1):
        l0 = lab("sp"); l1 = lab("spd")
        A(f"s_mov_b32 s{cnt}, 0x200000")
        A(f"{l0}:")
        A(f"ds_read_b32 v{vt}, v{vz} offset:{off}")
        A("s_waitcnt lgkmcnt(0)")
        A(f"v_readfirstlane_b32 s{st}, v{vt}")
        A(f"s_cmp_eq_u32 s{st}, {val}")
        A(f"s_cbranch_scc1 {l1}")
        A(f"s_sleep {sleep}")
        A(f"s_sub_u32 s{cnt}, s{cnt}, 1")
        A("s_cbranch_scc1 L_bail")
        A(f"s_branch {l0}")
        A(f"{l1}:")
    def unpack(dst0, dst1, src):
        A(f"v_lshlrev_b32 v{dst0}, 16, v{src}"); A(f"v_and_b32 v{dst1}, 0xffff0000, v{src}")
    def layernorm(X, F, T):
        for u in range(4): unpack(F + 2*u, F + 2*u + 1, X + u)
        for u in range(4): A(f"v_add_f32 v{T+u}, v{F+2*u}, v{F+2*u+1}")
        A(f"v_add_f32 v{T}, v{T}, v{T+1}"); A(f"v_add_f32 v{T+2}, v{T+2}, v{T+3}"); A(f"v_add_f32 v{T}, v{T}, v{T+2}")
        allred("v_add_f32", T, T + 4)
        A(f"v_mul_f32 v{T}, 0x3b000000, v{T}")
        A(f"v_sub_f32 v{T+2}, v{F}, v{T}"); A(f"v_mul_f32 v{T+1}, v{T+2}, v{T+2}")
        for k in range(1, 8):
            A(f"v_sub_f32 v{T+2+(k&1)}, v{F+k}, v{T}"); A(f"v_fmac_f32 v{T+1}, v{T+2+(k&1)}, v{T+2+(k&1)}")
        allred("v_add_f32", T + 1, T + 4)
        A(f"v_mul_f32 v{T+1}, 0x3b000000, v{T+1}")
        A(f"v_cvt_pk_bf16_f32 v{T+2}, v{T}, v{T+1}")
        unpack(T, T + 1, T + 2)
        A(f"v_add_f32 v{T+1}, 0x3727c5ac, v{T+1}")
        A(f"v_cvt_pk_bf16_f32 v{T+1}, v{T+1}, v{T+1}"); A(f"v_and_b32 v{T+1}, 0xffff0000, v{T+1}")
        A(f"v_sqrt_f32 v{T+1}, v{T+1}")
        A(f"v_cvt_pk_bf16_f32 v{T+1}, v{T+1}, v{T+1}"); A(f"v_and_b32 v{T+1}, 0xffff0000, v{T+1}")
        A(f"v_rcp_f32 v{T+3}, v{T+1}")
        for k in range(8): A(f"v_sub_f32 v{F+k}, v{F+k}, v{T}")
        for u in range(4): A(f"v_cvt_pk_bf16_f32 v{X+u}, v{F+2*u}, v{F+2*u+1}")
        for u in range(4): unpack(F + 2*u, F + 2*u + 1, X + u)
        for u in range(4):
            for e in range(2):
                f = F + 2*u + e; q = T + 4 + e
                A(f"v_mul_f32 v{q}, v{f}, v{T+3}")
                A(f"v_fma_f32 v{f}, -v{q}, v{T+1}, v{f}")
                A(f"v_fma_f32 v{q}, v{f}, v{T+3}, v{q}")
            A(f"v_cvt_pk_bf16_f32 v{X+u}, v{T+4}, v{T+5}")
    def onehot_gemv(n, XV, DATA, ACC, AT, REP, after):
        for j in range(n):
            a = AT + 4 * (j & 1); r = REP + (j & 1)
            A(f"v_perm_b32 v{r}, v{XV+(j>>1)}, v{XV+(j>>1)}, s{60+(j&1)}")
            for t in range(4): A(f"v_and_b32 v{a+t}, v{r}, v{4+t}")
            A(f"s_waitcnt vmcnt({n-1-j+after})")
            c = "0" if j == 0 else f"v[{ACC}:{ACC+3}]"
            A(f"v_mfma_f32_16x16x32_bf16 v[{ACC}:{ACC+3}], v[{a}:{a+3}], v[{DATA+4*j}:{DATA+4*j+3}], {c}")
    def srd(d, b, offs, nrec):
        A(f"s_add_u32 s{d}, s{b}, s{offs}"); A(f"s_addc_u32 s{d+1}, s{b+1}, 0")
        if nrec < 0: A(f"s_sub_u32 s{d+2}, {-nrec}, s{offs}")
        else: A(f"s_mov_b32 s{d+2}, {nrec}")
        A(f"s_mov_b32 s{d+3}, 0x20000")
    def poll_tail(vmax, lp, cnt):
        A(f"v_cmp_eq_u32 vcc, -1, v{vmax}")
        done = lab("pd")
        A(f"s_cbranch_vccz {done}")
        A(f"s_sub_u32 s{cnt}, s{cnt}, 1")
        A("s_cbranch_scc1 L_bail")
        A(f"s_branch {lp}")
        A(f"{done}:")
    def maxtree(dst, regs):
        regs = list(regs)
        if len(regs) == 2:
            A(f"v_max_u32 v{dst}, v{regs[0]}, v{regs[1]}"); return
        A(f"v_max3_u32 v{dst}, v{regs[0]}, v{regs[1]}, v{regs[2]}")
        rest = regs[3:]
        while rest:
            if len(rest) >= 2:
                A(f"v_max3_u32 v{dst}, v{dst}, v{rest[0]}, v{rest[1]}"); rest = rest[2:]
            else:
                A(f"v_max_u32 v{dst}, v{dst}, v{rest[0]}"); rest = rest[1:]

    A(f"{NAME}_kernel:")
    A("s_load_dwordx4 s[84:87], s[0:1], 8")
    A("s_cmp_ge_u32 s2, 256"); A("s_cbranch_scc1 L_bail")
    stamp(0)
    A("v_lshrrev_b32 v2, 6, v0")
    A("v_and_b32 v1, 63, v0")
    A("v_readfirstlane_b32 s3, v2")
    A("s_lshr_b32 s4, s2, 3"); A("s_and_b32 s5, s2, 7")
    stamp_init()
    A("v_and_b32 v8, 1, v1"); A("v_lshlrev_b32 v8, 4, v8"); A("v_mov_b32 v9, 0xffff"); A("v_lshlrev_b32 v9, v8, v9")
    A("v_bfe_u32 v10, v1, 1, 2")
    for t in range(4):
        A(f"v_cmp_eq_u32 vcc, {t}, v10"); A(f"v_cndmask_b32 v{4+t}, 0, v9, vcc")
    A("s_cmp_lt_u32 s3, 4"); A("s_cbranch_scc1 L_H")
    A("s_sub_u32 s6, s3, 4")
    A("s_lshl_b32 s20, s4, 22"); A("s_lshl_b32 s21, s5, 17"); A("s_add_u32 s20, s20, s21")
    A("s_lshl_b32 s21, s6, 14"); A("s_add_u32 s20, s20, s21"); A("s_add_u32 s20, s20, 0x300000")
    A("s_mov_b32 s22, 0")
    for term in rot.split("+"):
        if term == "0": continue
        src = {"w": "s6", "b": "s2"}[term[0]]; rest = term[1:]; mul = 1
        if "*" in rest:
            rest, m = rest.split("*"); mul = int(m)
        sh = int(rest) if rest else 0
        A(f"s_lshr_b32 s23, {src}, {sh}"); A(f"s_mul_i32 s23, s23, {mul}"); A("s_add_u32 s22, s22, s23")
    A("s_lshl_b32 s22, s22, 10")
    for j in range(16):
        A(f"s_add_u32 s{32+j}, s22, {j*1024}"); A(f"s_and_b32 s{32+j}, s{32+j}, 0x3c00")
    A("v_and_b32 v2, 3, v1"); A("v_lshlrev_b32 v2, 4, v2")
    A("v_bfe_u32 v8, v1, 2, 2"); A("v_lshl_or_b32 v2, v8, 8, v2")
    A("v_lshrrev_b32 v8, 4, v1"); A("v_lshl_or_b32 v2, v8, 6, v2")
    A("v_lshlrev_b32 v3, 4, v1")
    A("s_barrier")
    A("s_waitcnt lgkmcnt(0)")
    srd(12, 84, 20, 16384); srd(16, 86, 20, 16384)
    KD, VD = 40, 104
    for j in range(16): A(f"buffer_load_dwordx4 v[{KD+4*j}:{KD+4*j+3}], v2, s[12:15], s{32+j} offen{kflags}")
    for j in range(16): A(f"buffer_load_dwordx4 v[{VD+4*j}:{VD+4*j+3}], v3, s[16:19], s{32+j} offen{kflags}")
    stamp(1)
    A("v_mov_b32 v8, 0"); A("v_mov_b32 v9, 1")
    A("s_mov_b64 exec, 1"); A(f"ds_add_u32 v8, v9 offset:{L_ISS}"); A("s_mov_b64 exec, -1")
    for n in range(4):
        A(f"s_mov_b32 s{48+2*n}, {hex(0x000F000F << (4*n))}"); A(f"s_mov_b32 s{49+2*n}, {hex(0x000F000F << (4*n))}")
    for t in range(1, 4):
        A(f"s_mov_b32 s{54+2*t}, {hex(0x11111111 << t)}"); A(f"s_mov_b32 s{55+2*t}, {hex(0x11111111 << t)}")
    A("v_lshrrev_b32 v10, 4, v1"); A("v_lshlrev_b32 v10, 6, v10"); A("v_and_b32 v11, 3, v1"); A("v_lshl_or_b32 v10, v11, 4, v10")
    lds_spin(L_QF, 1, 8, 9, 24, 25)
    stamp(2)
    A(f"ds_read_b128 v[24:27], v10 offset:{L_Q}")
    A("s_waitcnt lgkmcnt(0)")
    for n in range(4):
        for u in range(4): A(f"v_cndmask_b32 v{8+4*n+u}, 0, v{24+u}, s[{48+2*n}:{49+2*n}]")
    A("s_waitcnt vmcnt(16)")
    for n in range(4):
        for g in range(4):
            j = 4 * g + n; D = 24 + 4 * g
            c = "0" if n == 0 else f"v[{D}:{D+3}]"
            A(f"v_mfma_f32_16x16x32_bf16 v[{D}:{D+3}], v[{KD+4*j}:{KD+4*j+3}], v[{8+4*n}:{8+4*n+3}], {c}")
    for t in range(1, 4):
        for g in range(4):
            D = 24 + 4 * g
            A(f"v_cndmask_b32 v{D}, v{D}, v{D+t}, s[{54+2*t}:{55+2*t}]")
    for g in range(4): A(f"v_add_f32_dpp v{8+g}, v{24+4*g}, v{24+4*g} quad_perm:[1,0,3,2] row_mask:0xf bank_mask:0xf")
    for g in range(4): A(f"v_add_f32_dpp v{8+g}, v{8+g}, v{8+g} quad_perm:[2,3,0,1] row_mask:0xf bank_mask:0xf")
    A("v_cvt_pk_bf16_f32 v12, v8, v9"); A("v_cvt_pk_bf16_f32 v13, v10, v11")
    unpack(8, 9, 12); unpack(10, 11, 13)
    for g in range(4): A(f"v_mul_f32 v{8+g}, 0x3db504f3, v{8+g}")
    A("v_cvt_pk_bf16_f32 v12, v8, v9"); A("v_cvt_pk_bf16_f32 v13, v10, v11")
    unpack(8, 9, 12); unpack(10, 11, 13)
    A("v_max3_f32 v14, v8, v9, v10"); A("v_max_f32 v14, v14, v11")
    allred("v_max_f32", 14, 16, rows=(8, 4))
    for g in range(4): A(f"v_sub_f32 v{8+g}, v{8+g}, v14")
    for g in range(4): A(f"v_mul_f32 v{8+g}, 0x3fb8aa3b, v{8+g}")
    for g in range(4): A(f"v_exp_f32 v{8+g}, v{8+g}")
    A("v_add_f32 v15, v8, v9"); A("v_add_f32 v16, v10, v11"); A("v_add_f32 v15, v15, v16")
    for g in range(4): A(f"v_cvt_pk_bf16_f32 v{8+g}, v{8+g}, v{8+g}")
    allred("v_add_f32", 15, 16, rows=(8, 4))
    A("s_lshl_b32 s24, s6, 3"); A("v_mov_b32 v16, s24"); A("v_mov_b32 v17, 0"); A("v_mov_b32 v18, 1")
    A("s_mov_b64 exec, 1")
    A(f"ds_write_b64 v16, v[14:15] offset:{L_ML}"); A(f"ds_add_u32 v17, v18 offset:{L_MLC}")
    A("s_mov_b64 exec, -1")
    for j in range(16):
        g, n = j >> 2, j & 3
        for t in range(4):
            A(f"v_and_b32_dpp v{KD+4*j+t}, v{8+g}, v{4+t} row_newbcast:{4*n} row_mask:0xf bank_mask:0xf")
    A("v_and_b32 v16, 15, v1"); A("v_lshlrev_b32 v16, 5, v16"); A("v_lshrrev_b32 v17, 4, v1"); A("v_lshl_or_b32 v16, v17, 4, v16")
    A("s_lshl_b32 s24, s6, 9"); A("v_add_u32 v16, s24, v16")
    stamp(3)
    for j in range(16):
        A(f"s_waitcnt vmcnt({15-j})")
        c = "0" if j == 0 else "v[24:27]"
        A(f"v_mfma_f32_16x16x32_bf16 v[24:27], v[{KD+4*j}:{KD+4*j+3}], v[{VD+4*j}:{VD+4*j+3}], {c}")
    stamp(4)
    A("s_mov_b32 exec_hi, 0")
    A(f"ds_write_b128 v16, v[24:27] offset:{L_OP}")
    A("s_mov_b32 exec_hi, -1")
    A("s_waitcnt lgkmcnt(0)")
    A("s_barrier")
    stamp(5)
    wave_end()

    A("L_H:")
    A("s_cmp_eq_u32 s3, 2"); A("s_cbranch_scc0 L_H_noinit")
    A("v_mov_b32 v8, 0"); A("v_mov_b32 v9, 0"); A("v_mov_b32 v10, 0"); A("v_mov_b32 v11, 0")
    A("ds_write_b128 v8, v[8:11]")
    A("s_waitcnt lgkmcnt(0)")
    A("L_H_noinit:")
    A("s_load_dwordx16 s[8:23], s[0:1], 0")
    A("s_load_dwordx8 s[24:31], s[0:1], 64")
    A("s_load_dwordx2 s[32:33], s[0:1], 96")
    A("s_barrier")
    A("s_mov_b32 s60, 0x01000100"); A("s_mov_b32 s61, 0x03020302")
    A("s_lshl_b32 s6, s2, 11")
    A("s_lshl_b32 s44, s4, 14")
    A("s_add_u32 s45, s44, 4096"); A("s_add_u32 s46, s44, 8192"); A("s_add_u32 s47, s44, 12288")
    A("v_lshlrev_b32 v3, 4, v1")
    A("v_lshrrev_b32 v8, 4, v1")
    A("v_and_b32 v9, 15, v1")
    A("v_mov_b32 v2, 0")
    A("s_waitcnt lgkmcnt(0)")
    A("s_mov_b32 s36, s32"); A("s_mov_b32 s37, s33"); A("s_mov_b32 s38, 0x80000"); A("s_mov_b32 s39, 0x20000")
    A("s_cmp_eq_u32 s3, 1"); A("s_cbranch_scc1 L_H1")
    A("s_cmp_eq_u32 s3, 2"); A("s_cbranch_scc1 L_H2")
    A("s_cmp_eq_u32 s3, 3"); A("s_cbranch_scc1 L_H3")
    X, F, T, XV, AT, REP, ACC, DATA, WOD = 12, 16, 24, 32, 40, 48, 52, 64, 128
    for k in range(4): A(f"v_mov_b32 v{56+k}, -1")
    A("buffer_store_dwordx4 v[56:59], v3, s[36:39], s6 offen sc1")
    A("buffer_store_dwordx4 v[56:59], v3, s[36:39], s6 offen offset:1024 sc1")
    A(f"global_load_dwordx4 v[{X}:{X+3}], v3, s[8:9]")
    A("s_lshl_b32 s48, s5, 19"); A("s_lshl_b32 s49, s4, 8"); A("s_add_u32 s48, s48, s49")
    srd(40, 14, 48, -0x400000)
    A("v_lshlrev_b32 v10, 17, v8"); A("v_lshl_or_b32 v10, v9, 4, v10")
    for j in range(16):
        A(f"s_mov_b32 s49, {j*8192}")
        A(f"buffer_load_dwordx4 v[{DATA+4*j}:{DATA+4*j+3}], v10, s[40:43], s49 offen{wflags}")
    A("s_waitcnt vmcnt(16)")
    stamp(1)
    A("v_mov_b32 v10, s2"); A("v_mov_b32 v11, 1")
    A("s_mov_b64 exec, 1"); A("global_store_byte v10, v11, s[30:31] sc1"); A(f"ds_write_b32 v2, v11 offset:{L_CLR}"); A("s_mov_b64 exec, -1")
    layernorm(X, F, T)
    A(f"ds_write_b128 v3, v[{X}:{X+3}] offset:{L_XN}")
    A("s_lshl_b32 s48, s5, 7"); A("v_lshlrev_b32 v10, 5, v8"); A("v_add_u32 v10, s48, v10")
    A(f"ds_read_b128 v[{XV}:{XV+3}], v10 offset:{L_XN}"); A(f"ds_read_b128 v[{XV+4}:{XV+7}], v10 offset:{L_XN+16}")
    A("s_waitcnt lgkmcnt(0)")
    onehot_gemv(16, XV, DATA, ACC, AT, REP, 1)
    A("v_lshlrev_b32 v10, 5, v9"); A("v_lshl_or_b32 v10, v8, 4, v10")
    for r in range(4): A(f"v_min_u32 v{ACC+r}, -2, v{ACC+r}")
    A("s_mov_b32 exec_hi, 0")
    A(f"buffer_store_dwordx4 v[{ACC}:{ACC+3}], v10, s[36:39], s6 offen offset:{OFF_Q} sc1")
    A("s_mov_b32 exec_hi, -1")
    stamp(2)
    A("s_lshl_b32 s48, s4, 3"); A("s_add_u32 s34, s30, s48"); A("s_addc_u32 s35, s31, 0")
    A("s_mov_b32 s50, 0x40000"); A("s_mov_b32 s51, 0x01010101")
    A("L_fl0:")
    A("global_load_dwordx2 v[10:11], v2, s[34:35] sc1")
    A("s_waitcnt vmcnt(0)")
    A("v_and_b32 v10, v10, v11")
    A("v_cmp_ne_u32 vcc, s51, v10")
    A("s_cbranch_vccz L_fl0d")
    A("s_sub_u32 s50, s50, 1"); A("s_cbranch_scc1 L_bail"); A("s_branch L_fl0")
    A("L_fl0d:")
    stamp(3)
    A("v_lshlrev_b32 v10, 3, v1")
    A("L_qp:")
    for j in range(8):
        A(f"buffer_load_dwordx2 v[{DATA+2*j}:{DATA+2*j+1}], v10, s[36:39], s{44+(j>>1)} offen offset:{OFF_Q+2048*(j&1)} sc1")
    A("s_waitcnt vmcnt(0)")
    maxtree(11, range(DATA, DATA + 16))
    poll_tail(11, "L_qp", 50)
    for j in range(1, 8):
        A(f"v_add_f32 v{DATA}, v{DATA}, v{DATA+2*j}"); A(f"v_add_f32 v{DATA+1}, v{DATA+1}, v{DATA+2*j+1}")
    A(f"v_cvt_pk_bf16_f32 v{DATA}, v{DATA}, v{DATA+1}")
    A("v_lshlrev_b32 v10, 2, v1"); A("v_mov_b32 v11, 1")
    A(f"ds_write_b32 v10, v{DATA} offset:{L_Q}")
    A(f"ds_write_b32 v2, v11 offset:{L_QF}")
    stamp(4)
    A("s_branch L_Hc")
    A("L_H1:")
    A("s_cmp_ge_u32 s4, 22"); A("s_cbranch_scc1 L_Hc")
    A(f"global_load_dwordx4 v[{X}:{X+3}], v3, s[8:9]")
    A("s_mul_i32 s48, s5, 176128"); A("s_lshl_b32 s49, s4, 7"); A("s_add_u32 s48, s48, s49")
    srd(40, 20, 48, -W1_BYTES)
    A("v_lshrrev_b32 v10, 3, v1"); A("v_lshlrev_b32 v10, 3, v10")
    A("v_and_b32 v11, 7, v1"); A("v_lshlrev_b32 v11, 4, v11")
    A("s_movk_i32 s49, 2752"); A("v_mad_u32_u24 v60, v10, s49, v11")
    A("v_lshl_or_b32 v61, v10, 10, v11")
    A("v_lshlrev_b32 v62, 1, v10")
    for n in range(8):
        A(f"s_mov_b32 s49, {n*2752}")
        A(f"buffer_load_dwordx4 v[{DATA+4*n}:{DATA+4*n+3}], v60, s[40:43], s49 offen{wflags}")
    A("s_lshl_b32 s48, s4, 7")
    srd(40, 22, 48, -2752)
    A("v_lshlrev_b32 v10, 1, v1")
    A("buffer_load_ushort v63, v10, s[40:43], 0 offen")
    A("s_waitcnt vmcnt(9)")
    stamp(1)
    layernorm(X, F, T); layernorm(X, F, T)
    A(f"ds_write_b128 v3, v[{X}:{X+3}] offset:{L_Y}")
    A("s_lshl_b32 s48, s5, 7"); A("v_add_u32 v10, s48, v62")
    A(f"ds_read_b128 v[{XV}:{XV+3}], v10 offset:{L_Y}")
    A("s_waitcnt lgkmcnt(0)")
    def gemv8_publish(after, off):
        onehot_gemv(8, XV, DATA, ACC, AT, REP, after)
        for r in range(4): A(f"v_mov_b32 v{AT+r}, v{ACC+r}")
        for r in range(4): A(f"v_permlane32_swap_b32 v{ACC+r}, v{AT+r}")
        for r in range(4): A(f"v_add_f32_dpp v{ACC+r}, v{AT+r}, v{ACC+r} row_ror:8 row_mask:0xf bank_mask:0xf")
        for r in range(4): A(f"v_min_u32 v{ACC+r}, -2, v{ACC+r}")
        A("v_lshlrev_b32 v10, 5, v9"); A("v_lshl_or_b32 v10, v8, 4, v10")
        A("s_mov_b64 exec, 0x00ff00ff")
        A(f"buffer_store_dwordx4 v[{ACC}:{ACC+3}], v10, s[36:39], s6 offen offset:{off} sc1")
        A("s_mov_b64 exec, -1")
    lds_spin(L_CLR, 1, 2, 10, 48, 50, sleep=1)
    gemv8_publish(1, OFF_Z)
    stamp(2)
    lds_spin(L_QF, 1, 2, 10, 48, 50, sleep=2)
    A("s_lshl_b32 s48, s4, 16"); A("s_lshl_b32 s49, s5, 7"); A("s_add_u32 s48, s48, s49")
    srd(40, 24, 48, -W1_BYTES)
    A("s_mov_b32 s50, 0x40000")
    A("v_lshlrev_b32 v10, 2, v1")
    A("L_zp:")
    for j in range(8):
        A(f"buffer_load_dword v{F+j}, v10, s[36:39], s{44+(j>>1)} offen offset:{OFF_Z+2048*(j&1)} sc1")
    A("s_waitcnt vmcnt(0)")
    maxtree(11, range(F, F + 8))
    poll_tail(11, "L_zp", 50)
    stamp(3)
    A("s_movk_i32 s49, 4096")
    for n in range(8):
        so = "0" if n < 4 else "s49"
        A(f"buffer_load_dwordx4 v[{DATA+4*n}:{DATA+4*n+3}], v61, s[40:43], {so} offen offset:{(n&3)*1024}{wflags}")
    for j in range(1, 8): A(f"v_add_f32 v{F}, v{F}, v{F+j}")
    A(f"v_cvt_pk_bf16_f32 v{F}, v{F}, v{F}"); A(f"v_and_b32 v{F}, 0xffff0000, v{F}")
    A("v_lshlrev_b32 v63, 16, v63"); A(f"v_add_f32 v{F}, v{F}, v63")
    A(f"v_cvt_pk_bf16_f32 v{F}, v{F}, v{F}"); A(f"v_and_b32 v{F}, 0xffff0000, v{F}")
    A(f"v_mul_f32 v{F+1}, v{F}, v{F}"); A(f"v_mul_f32 v{F+1}, v{F+1}, v{F}")
    A(f"v_mov_b32 v{F+2}, 0x3d372713"); A(f"v_fma_f32 v{F+1}, v{F+2}, v{F+1}, v{F}")
    A(f"v_mul_f32 v{F+1}, 0xc0135761, v{F+1}")
    A(f"v_exp_f32 v{F+1}, v{F+1}"); A(f"v_add_f32 v{F+1}, 1.0, v{F+1}"); A(f"v_rcp_f32 v{F+1}, v{F+1}")
    A(f"v_mul_f32 v{F}, v{F}, v{F+1}")
    A(f"v_cvt_pk_bf16_f32 v{F}, v{F}, v{F}")
    A("s_lshl_b32 s48, s4, 6"); A("s_sub_u32 s48, 1376, s48"); A("v_cmp_gt_u32 vcc, s48, v1"); A(f"v_cndmask_b32 v{F}, 0, v{F}, vcc")
    A("v_lshlrev_b32 v10, 1, v1")
    A(f"ds_write_b16 v10, v{F} offset:{L_H}")
    A(f"ds_read_b128 v[{XV}:{XV+3}], v62 offset:{L_H}")
    A("s_waitcnt lgkmcnt(0)")
    gemv8_publish(0, OFF_YB)
    stamp(4)
    A("s_branch L_Hc")
    A("L_H2:")
    A("s_lshl_b32 s48, s4, 17"); A("v_mov_b32 v10, s48")
    A("global_load_dword v61, v10, s[16:17]")
    A("global_load_dword v62, v2, s[28:29]")
    A("s_branch L_Hc")
    A("L_H3:")
    A("s_lshl_b32 s48, s5, 7"); A("s_lshl_b32 s49, s4, 2"); A("s_add_u32 s48, s48, s49"); A("v_mov_b32 v60, s48")
    A("global_load_dword v61, v60, s[8:9]")
    A("global_load_dword v62, v60, s[26:27]")
    lds_spin(L_QF, 1, 2, 10, 48, 50, sleep=4)
    A("s_mov_b32 s50, 0x40000"); A("s_mov_b32 s51, 0x01010101")
    A("v_lshlrev_b32 v10, 2, v1")
    A("L_fl3:")
    A("global_load_dword v11, v10, s[30:31] sc1")
    A("s_waitcnt vmcnt(0)")
    A("v_cmp_ne_u32 vcc, s51, v11")
    A("s_cbranch_vccz L_Hc")
    A("s_sleep 8")
    A("s_sub_u32 s50, s50, 1"); A("s_cbranch_scc1 L_bail"); A("s_branch L_fl3")
    A("L_Hc:")
    A("s_lshl_b32 s48, s4, 2"); A("s_add_u32 s48, s48, s3"); A("s_lshl_b32 s48, s48, 15"); A("s_lshl_b32 s49, s5, 7"); A("s_add_u32 s48, s48, s49")
    srd(40, 16, 48, -0x400000)
    A("v_lshrrev_b32 v10, 3, v1"); A("v_and_b32 v11, 7, v1"); A("v_lshlrev_b32 v11, 4, v11")
    A("v_lshl_or_b32 v12, v10, 10, v11")
    A(f"s_movk_i32 s49, {RS}"); A("v_mad_u32_u24 v13, v10, s49, v11")
    A(f"s_mul_i32 s48, s3, {32*RS}"); A("v_add_u32 v13, s48, v13")
    A("v_bfe_u32 v10, v1, 2, 2"); A("v_lshl_add_u32 v10, v8, 3, v10"); A("v_and_b32 v11, 3, v1"); A("v_lshlrev_b32 v11, 3, v11")
    A("v_mad_u32_u24 v14, v10, s49, v11"); A("s_lshl_b32 s48, s3, 5"); A("v_add_u32 v14, s48, v14")
    A("v_and_b32 v10, 7, v1"); A("v_lshlrev_b32 v15, 11, v10")
    A("v_lshrrev_b32 v10, 3, v9"); A("v_lshl_or_b32 v16, v10, 8, v15"); A("v_lshl_or_b32 v16, v8, 4, v16")
    lds_spin(L_ISS, 8, 2, 10, 48, 50, sleep=2)
    for u in range(4):
        A(f"s_mov_b32 s49, {u*8192}")
        A(f"buffer_load_dwordx4 v[{WOD+4*u}:{WOD+4*u+3}], v12, s[40:43], s49 offen{wflags}")
    stamp(5)
    A("s_cmp_eq_u32 s3, 0"); A("s_cbranch_scc0 L_F1")
    lds_spin(L_MLC, 8, 2, 10, 48, 50)
    for k in range(4): A(f"ds_read_b128 v[{20+4*k}:{23+4*k}], v2 offset:{L_ML+16*k}")
    A("s_waitcnt lgkmcnt(0)")
    A("v_max3_f32 v18, v20, v22, v24"); A("v_max3_f32 v18, v18, v26, v28"); A("v_max3_f32 v18, v18, v30, v32"); A("v_max_f32 v18, v18, v34")
    for k in range(8): A(f"v_sub_f32 v{20+2*k}, v{20+2*k}, v18")
    for k in range(8): A(f"v_mul_f32 v{20+2*k}, 0x3fb8aa3b, v{20+2*k}")
    for k in range(8): A(f"v_exp_f32 v{20+2*k}, v{20+2*k}")
    A("v_mul_f32 v19, v20, v21")
    for k in range(1, 8): A(f"v_fmac_f32 v19, v{20+2*k}, v{21+2*k}")
    A("v_min_u32 v18, -2, v18"); A("v_min_u32 v19, -2, v19")
    A("s_mov_b64 exec, 1")
    A(f"buffer_store_dwordx2 v[18:19], v2, s[36:39], s6 offen offset:{OFF_ML} sc1")
    A("s_mov_b64 exec, -1")
    A("v_lshlrev_b32 v10, 3, v1"); A("v_lshlrev_b32 v11, 2, v1")
    A("s_barrier")
    for k in range(8): A(f"ds_read_b64 v[{40+2*k}:{41+2*k}], v10 offset:{L_OP+512*k}")
    for k in range(8):
        A(f"s_waitcnt lgkmcnt({7-k})")
        if k == 0:
            A("v_mul_f32 v36, v20, v40"); A("v_mul_f32 v37, v20, v41")
        else:
            A(f"v_fmac_f32 v36, v{20+2*k}, v{40+2*k}"); A(f"v_fmac_f32 v37, v{20+2*k}, v{41+2*k}")
    A("v_cvt_pk_bf16_f32 v38, v36, v37")
    unpack(40, 41, 38)
    A("v_min_u32 v38, -2, v38")
    A(f"buffer_store_dword v38, v11, s[36:39], s6 offen offset:{OFF_O} sc1")
    A("v_sub_f32 v36, v36, v40"); A("v_sub_f32 v37, v37, v41")
    A("v_cvt_pk_bf16_f32 v39, v36, v37"); A("v_min_u32 v39, -2, v39")
    A(f"buffer_store_dword v39, v11, s[36:39], s6 offen offset:{OFF_O+256} sc1")
    A("s_branch L_F2")
    A("L_F1:")
    A("s_barrier")
    A("L_F2:")
    stamp(6)
    A("s_mov_b32 s50, 0x40000")
    A("L_mlp:")
    A(f"buffer_load_dwordx2 v[96:97], v15, s[36:39], s44 offen offset:{OFF_ML} sc1")
    A("s_waitcnt vmcnt(0)")
    A("v_max_u32 v11, v96, v97")
    poll_tail(11, "L_mlp", 50)
    for u in range(4): A(f"ds_write_b128 v13, v[{WOD+4*u}:{WOD+4*u+3}] offset:{L_WO+u*8*RS}")
    A("s_waitcnt lgkmcnt(0)")
    A("s_barrier")
    OA, OB = 80, 64
    def oloads():
        for s in range(4):
            A(f"buffer_load_dwordx4 v[{OA+4*s}:{OA+4*s+3}], v16, s[36:39], s44 offen offset:{OFF_O+64*s} sc1")
    oloads()
    for s in range(4):
        for hf in range(2):
            A(f"ds_read_b64_tr_b16 v[{OB+4*s+2*hf}:{OB+4*s+2*hf+1}], v14 offset:{L_WO+(32*s+4*hf)*RS}")
    def red8(op, a):
        A(f"{op}_dpp v{a}, v{a}, v{a} quad_perm:[1,0,3,2] row_mask:0xf bank_mask:0xf")
        A(f"{op}_dpp v{a}, v{a}, v{a} quad_perm:[2,3,0,1] row_mask:0xf bank_mask:0xf")
        A(f"{op}_dpp v{a}, v{a}, v{a} row_half_mirror row_mask:0xf bank_mask:0xf")
    A("v_mov_b32 v98, v96"); red8("v_max_f32", 98)
    A("v_sub_f32 v96, v96, v98"); A("v_mul_f32 v96, 0x3fb8aa3b, v96"); A("v_exp_f32 v96, v96")
    A("v_mul_f32 v97, v96, v97"); red8("v_add_f32", 97)
    A("v_rcp_f32 v98, v97")
    A("v_fma_f32 v99, -v97, v98, 1.0"); A("v_fma_f32 v98, v99, v98, v98")
    A("v_mul_f32 v96, v96, v98")
    for r in range(4):
        A(f"v_mov_b32_dpp v{100+r}, v96 row_newbcast:{r} row_mask:0x5 bank_mask:0xf")
        A(f"v_mov_b32_dpp v{100+r}, v96 row_newbcast:{4+r} row_mask:0xa bank_mask:0xf")
    A("v_lshlrev_b32 v10, 2, v1"); A("s_lshl_b32 s48, s3, 6"); A("s_add_u32 s48, s48, s6")
    A("L_op:")
    A("s_waitcnt vmcnt(0) lgkmcnt(0)")
    for s in range(4):
        c = "0" if s == 0 else "v[104:107]"
        A(f"v_mfma_f32_16x16x32_bf16 v[104:107], v[{OA+4*s}:{OA+4*s+3}], v[{OB+4*s}:{OB+4*s+3}], {c}")
    maxtree(11, range(OA, OA + 16))
    A("v_cmp_eq_u32 vcc, -1, v11")
    A("s_cbranch_vccz L_opd")
    oloads()
    A("s_sub_u32 s50, s50, 1"); A("s_cbranch_scc1 L_bail"); A("s_branch L_op")
    A("L_opd:")
    A("s_nop 1")
    A("v_mul_f32 v108, v100, v104"); A("v_fmac_f32 v108, v101, v105"); A("v_fmac_f32 v108, v102, v106"); A("v_fmac_f32 v108, v103, v107")
    allred("v_add_f32", 108, 109, rows=())
    A("v_min_u32 v108, -2, v108")
    A("s_mov_b64 exec, 0xffff")
    A(f"buffer_store_dword v108, v10, s[36:39], s48 offen offset:{OFF_YA} sc1")
    A("s_mov_b64 exec, -1")
    A("s_cmp_eq_u32 s3, 3"); A("s_cbranch_scc1 L_fin")
    stamp(7)
    wave_end()
    A("L_fin:")
    A("v_and_b32 v10, 31, v1"); A("v_lshlrev_b32 v10, 14, v10"); A("v_lshrrev_b32 v11, 5, v1"); A("v_lshl_or_b32 v10, v11, 8, v10")
    A("s_lshl_b32 s48, s5, 11"); A("s_lshl_b32 s49, s4, 3"); A("s_add_u32 s48, s48, s49")
    A("s_lshl_b32 s52, s5, 7"); A("s_lshl_b32 s53, s4, 2"); A("s_add_u32 s52, s52, s53"); A("v_mov_b32 v60, s52")
    A("v_mov_b32 v20, 0"); A("v_mov_b32 v21, 0")
    A("s_mov_b32 exec_hi, 0x3fffff")
    A("L_yp:")
    A(f"buffer_load_dwordx2 v[20:21], v10, s[36:39], s48 offen offset:{OFF_YA} sc1")
    A("s_waitcnt vmcnt(0)")
    A("v_max_u32 v11, v20, v21")
    poll_tail(11, "L_yp", 50)
    A("s_mov_b64 exec, -1")
    for r in (8, 4, 2, 1):
        for a in (20, 21): A(f"v_add_f32_dpp v{a}, v{a}, v{a} row_ror:{r} row_mask:0xf bank_mask:0xf")
    A("v_mov_b32 v22, v20"); A("v_mov_b32 v23, v21")
    A("v_permlane16_swap_b32 v20, v22"); A("v_permlane16_swap_b32 v21, v23")
    A("v_add_f32 v20, v20, v22"); A("v_add_f32 v21, v21, v23")
    A("v_cvt_pk_bf16_f32 v20, v20, v21")
    A("v_mov_b32 v22, v61"); A("v_mov_b32 v23, v62")
    A("v_permlane32_swap_b32 v22, v23")
    unpack(24, 25, 20); unpack(26, 27, 22)
    A("v_add_f32 v24, v24, v26"); A("v_add_f32 v25, v25, v27")
    A("v_cvt_pk_bf16_f32 v20, v24, v25")
    A("v_mov_b32 v21, v20")
    A("v_permlane32_swap_b32 v20, v21")
    unpack(24, 25, 20); unpack(26, 27, 21)
    A("v_add_f32 v24, v24, v26"); A("v_add_f32 v25, v25, v27")
    A("v_cvt_pk_bf16_f32 v20, v24, v25")
    A("s_mov_b64 exec, 1")
    A("global_store_dword v60, v20, s[28:29]")
    stamp(7)
    if stamps:
        A("L_stamps:")
        A("s_mov_b64 exec, 1")
        A("s_load_dwordx2 s[32:33], s[0:1], 96")
        A("s_lshl_b32 s48, s2, 4"); A("s_add_u32 s48, s48, s3"); A("s_lshl_b32 s48, s48, 6"); A(f"s_add_u32 s48, s48, {STAMP_OFF}")
        A("v_mov_b32 v1, s48")
        A("s_waitcnt lgkmcnt(0)")
        for k in range(8):
            A(f"v_mov_b32 v2, s{64+2*k}"); A(f"v_mov_b32 v3, s{65+2*k}")
            A(f"global_store_dwordx2 v1, v[2:3], s[32:33] offset:{8*k}")
    A("L_bail:")
    A("s_endpgm")
    body = pad(L)
    out = [HDR.rstrip("\n"), f"; @launch grid=(256,1,1) block=(768,1,1) lds={LDS_BYTES}",
           '.amdgcn_target "amdgcn-amd-amdhsa--gfx950"', ".text", f".globl {NAME}_kernel", ".p2align 8", f".type {NAME}_kernel,@function"]
    out += body
    out += ['.section .rodata,"a"', ".p2align 6", f".amdhsa_kernel {NAME}_kernel",
            "  .amdhsa_next_free_vgpr 168", "  .amdhsa_next_free_sgpr 96", "  .amdhsa_accum_offset 168",
            "  .amdhsa_group_segment_fixed_size 0", "  .amdhsa_kernarg_size 104", "  .amdhsa_user_sgpr_count 2",
            "  .amdhsa_user_sgpr_kernarg_segment_ptr 1", "  .amdhsa_system_sgpr_workgroup_id_x 1", ".end_amdhsa_kernel"]
    return "\n".join(out) + "\n"

if __name__ == "__main__":
    open("k1.s", "w").write(gen())
    open("k1_st.s", "w").write(gen(stamps=True))
```
